```python
import torch

def _softmax(x, axis=-1):
    return torch.softmax(x, dim=axis)
def _gelu(x):
    return torch.nn.functional.gelu(x, approximate="tanh")
def _silu(x):
    return torch.nn.functional.silu(x)
def _sigmoid(x):
    return torch.sigmoid(x)
def _layernorm(x, axis=-1, eps=1e-5):
    m = x.mean(dim=axis, keepdim=True)
    v = x.var(dim=axis, keepdim=True, unbiased=False)
    return (x - m) / torch.sqrt(v + eps)
def _scatter_add(tgt, idx, src, axis=0):
    return tgt.clone().index_add_(axis, idx, src)
def _segment_sum(src, seg, n):
    out = torch.zeros((n,) + src.shape[1:], dtype=src.dtype)
    return out.index_add_(0, seg, src)
def _pad(x, pw):
    flat = tuple(v for pair in reversed(pw) for v in pair)
    return torch.nn.functional.pad(x, flat)

kernel_name = 'parallel_sum__softmax_full_mha__swiglu_ffn__prompt'

def setup_inputs():

    _w = (lambda a: (lambda t: t.to(torch.bfloat16) if t.is_floating_point() else t)(torch.as_tensor(a)))
    def _A_setup():
        B, S, D = 1, 2048, 512
        return {
            "x": _w((lambda *s: torch.randn(*s, dtype=torch.bfloat16) * 0.05)(B, S, D)),
            "wqkv": _w((lambda *s: torch.randn(*s, dtype=torch.bfloat16) * 0.2)(D, 3 * D)),
            "wo": _w((lambda *s: torch.randn(*s, dtype=torch.bfloat16) * 0.1)(D, D)),
        }
    _A_in = _A_setup()

    def _B_setup():
        B, S, D, F = 1, 2048, 512, 1792
        return {
            "x": _w((lambda *s: torch.randn(*s, dtype=torch.bfloat16) * 0.05)(B, S, D)),
            "w_gate": _w((lambda *s: torch.randn(*s, dtype=torch.bfloat16) * 0.1)(D, F)),
            "w_up": _w((lambda *s: torch.randn(*s, dtype=torch.bfloat16) * 0.1)(D, F)),
            "w_down": _w((lambda *s: torch.randn(*s, dtype=torch.bfloat16) * 0.1)(F, D)),
        }
    _B_in = _B_setup()

    return {
        "A_x": _A_in["x"],
        "A_wqkv": _A_in["wqkv"],
        "A_wo": _A_in["wo"],
        "B_x": _B_in["x"],
        "B_w_gate": _B_in["w_gate"],
        "B_w_up": _B_in["w_up"],
        "B_w_down": _B_in["w_down"],
    }

def reference(A_x, A_wqkv, A_wo, B_x, B_w_gate, B_w_up, B_w_down):
    def _A_ref(x, wqkv, wo):
        B, S, D = x.shape
        H = 32; Dh = D // H
        qkv = (lambda x, *d: x.permute(*d))((x @ wqkv).reshape(B, S, 3, H, Dh), 2, 0, 3, 1, 4)
        q, k, v = qkv[0], qkv[1], qkv[2]
        scale = Dh ** -0.5
        scores = torch.einsum("bhqd,bhkd->bhqk", q, k) * scale
        p = _softmax(scores, axis=-1)
        o = torch.einsum("bhqk,bhkd->bhqd", p, v)
        return (lambda x, *d: x.permute(*d))(o, 0, 2, 1, 3).reshape(B, S, D) @ wo

    def _B_ref(x, w_gate, w_up, w_down):
        g = _silu(x @ w_gate)
        u = x @ w_up
        return (g * u) @ w_down

    x = A_x
    xn = _layernorm(x, axis=-1)
    return x + _A_ref(xn, A_wqkv, A_wo) + _B_ref(xn, B_w_gate, B_w_up, B_w_down)
```

```python
import re

class Asm:
    def __init__(self):
        self.lines = []
    def __call__(self, s, *more):
        for t in (s,) + more:
            for l in t.strip("\n").split("\n"):
                l = l.strip()
                if not l: continue
                if l.endswith(":") or l.startswith("."):
                    self.lines.append(l)
                else:
                    self.lines.append("    " + l)
    def c(self, s):
        self.lines.append("    ; " + s)
    def label(self, n):
        self.lines.append(n + ":")
    def text(self):
        return "\n".join(self.lines) + "\n"

def vr(b, n=1):
    return f"v{b}" if n == 1 else f"v[{b}:{b+n-1}]"
def sr(b, n=1):
    return f"s{b}" if n == 1 else f"s[{b}:{b+n-1}]"

_REG = re.compile(r"\b([vsa])(\d+)\b|\b([vsa])\[(\d+):(\d+)\]|\b(vcc|exec|m0|scc)(_lo|_hi)?\b")
def regs_of(op):
    out = set()
    for m in _REG.finditer(op):
        if m.group(1): out.add((m.group(1), int(m.group(2))))
        elif m.group(3):
            for i in range(int(m.group(4)), int(m.group(5)) + 1): out.add((m.group(3), i))
        else: out.add((m.group(6), 0))
    return out

TRANS = ("v_exp_f32", "v_log_f32", "v_rcp_f32", "v_rsq_f32", "v_sqrt_f32", "v_sin_f32", "v_cos_f32", "v_rcp_iflag_f32")
class Ins:
    def __init__(self, text):
        self.text = text
        t = text.split(";")[0].strip()
        parts = t.split(None, 1)
        self.op = parts[0]
        rest = parts[1] if len(parts) > 1 else ""
        ops, depth, cur = [], 0, ""
        for ch in rest:
            if ch == "[": depth += 1
            if ch == "]": depth -= 1
            if ch == "," and depth == 0:
                ops.append(cur.strip()); cur = ""
            else: cur += ch
        if cur.strip(): ops.append(cur.strip())
        self.ops = ops
        op = self.op
        self.is_mfma = op.startswith("v_mfma")
        self.is_valu = op.startswith("v_") and not self.is_mfma
        self.is_salu = op.startswith("s_")
        self.is_ds = op.startswith("ds_")
        self.is_vmem = op.startswith(("buffer_", "global_", "flat_"))
        self.is_trans = op.replace("_e32", "").replace("_e64", "") in TRANS
        self.is_dot = op.startswith("v_dot")
        self.is_dpp = "_dpp" in op or any(k in rest for k in ("quad_perm", "row_shr", "row_shl", "row_ror", "row_bcast", "row_mirror", "row_half_mirror", "wave_"))
        self.is_perml = op.startswith("v_permlane")
        self.is_rdl = op.startswith(("v_readfirstlane", "v_readlane", "v_writelane"))
        self.is_sdwa = "_sdwa" in op
        self.lds_dma = self.is_vmem and (re.search(r"\blds\b", rest) is not None or "load_lds" in op)
        W, R = set(), set()
        o = [regs_of(x.split(" ")[0]) if i == len(ops) - 1 and self.is_vmem is False and False else regs_of(x) for i, x in enumerate(ops)]
        if self.is_mfma:
            W = o[0]; self.A = o[1]; self.B = o[2]; self.C = o[3]; R = o[1] | o[2] | o[3]
            self.passes = 8 if "32x32x16" in op else 4 if "16x16x32" in op else 16
        elif self.is_valu:
            if op.startswith("v_cmp"):
                W = o[0]; R = set().union(*o[1:])
                if op.startswith("v_cmpx"): W = W | {("exec", 0)}
            elif op.startswith(("v_add_co", "v_sub_co", "v_addc_co", "v_subb_co", "v_subrev_co")):
                W = o[0] | o[1]; R = set().union(*o[2:])
            elif self.is_perml and "swap" in op:
                W = o[0] | o[1]; R = o[0] | o[1]
            elif op == "v_nop": pass
            else:
                W = o[0]; R = set().union(*o[1:]) if len(o) > 1 else set()
                if op.startswith(("v_fmac", "v_dot2c", "v_pk_fmac", "v_writelane")) or "UNUSED_PRESERVE" in rest or self.is_dpp: R = R | o[0]
                if op.startswith("v_cndmask") and len(ops) == 3: R = R | {("vcc", 0)}
        elif self.is_ds:
            if op.startswith(("ds_read", "ds_bpermute", "ds_permute", "ds_swizzle")) or "_rtn" in op:
                W = o[0]; R = set().union(*o[1:])
            else:
                R = set().union(*o)
        elif self.is_vmem:
            if self.lds_dma: R = set().union(*o) | {("m0", 0)}
            elif "load" in op: W = o[0]; R = set().union(*o[1:])
            elif "atomic" in op and "sc0" in rest: W = o[0]; R = set().union(*o)
            elif o: R = set().union(*o)
            self.wide_store = ("store_dwordx4" in op or "store_dwordx3" in op)
            if self.wide_store:
                self.data = o[0] if op.startswith("buffer") else o[1]
        elif self.is_salu:
            if op.startswith(("s_cmp", "s_cbranch", "s_branch", "s_waitcnt", "s_nop", "s_barrier", "s_endpgm", "s_setprio", "s_sleep", "s_bitcmp")):
                R = set().union(*o) if o else set()
            else:
                W = o[0] if o else set(); R = set().union(*o[1:]) if len(o) > 1 else set()
                if "saveexec" in op: W = W | {("exec", 0)}
        self.W, self.R = W, R
        self.states = 1
        if op == "s_nop": self.states = int(ops[0], 0) + 1

def need(p, c):
    n = 0
    def vg(s): return {r for r in s if r[0] in "va"}
    def sg(s): return {r for r in s if r[0] == "s" or r[0] == "vcc"}
    if p.is_valu:
        if c.is_mfma and vg(p.W) & c.R: n = max(n, 3 if p.is_dot else 2)
        if c.is_vmem and sg(p.W) & c.R: n = max(n, 5)
        if c.is_valu and sg(p.W) & c.R: n = max(n, 4 if c.is_rdl else 2)
        if c.is_rdl and vg(p.W) & c.R: n = max(n, 1)
        if p.is_trans and (c.is_valu or c.is_mfma) and not c.is_trans and vg(p.W) & c.R: n = max(n, 1)
        if (c.is_dpp or c.is_perml) and vg(p.W) & c.R: n = max(n, 2)
        if p.is_sdwa and c.is_valu and vg(p.W) & (c.R | c.W): n = max(n, 1)
        if p.is_dot and vg(p.W) & (c.R | c.W):
            if not (c.is_dot and c.op == p.op and not (vg(p.W) & regs_of(",".join(c.ops[1:3])))): n = max(n, 3)
        if ("exec", 0) in p.W:
            if c.is_mfma or c.is_rdl or c.is_perml: n = max(n, 4)
            if c.is_dpp: n = max(n, 5)
    if p.is_mfma:
        t = {4: (6, 8, 3), 8: (10, 12, 7), 16: (18, 20, 15)}[p.passes]
        if c.is_mfma:
            if p.W & (c.A | c.B): n = max(n, t[1])
            if p.W & c.C and not (p.W == c.C and c.passes == p.passes): n = max(n, t[0])
            if p.W & c.W and not (p.W == c.C): n = max(n, t[0])
        elif (c.is_valu or c.is_vmem or c.is_ds) and p.W & (c.R | c.W): n = max(n, t[1])
        if c.is_valu and vg(p.C) & c.W: n = max(n, t[2])
    if p.is_salu and ("m0", 0) in p.W and c.is_vmem and c.lds_dma: n = max(n, 1)
    if p.is_vmem and getattr(p, "wide_store", False) and p.data & c.W: n = max(n, 2 if c.is_valu else 1)
    return n

def check_hazards(text, maxback=22):
    items = []
    labels = {}
    for l in text.split("\n"):
        s = l.split(";")[0].strip()
        if not s or s.startswith("."): continue
        if s.endswith(":"):
            labels[s[:-1]] = len(items); continue
        items.append(Ins(s))
    errs = set()
    n = len(items)
    def succ(i):
        it = items[i]
        if it.op == "s_endpgm": return []
        if it.op == "s_branch": return [labels[it.ops[0]]]
        if it.op.startswith("s_cbranch"): return [i + 1, labels[it.ops[0]]]
        return [i + 1]
    for i, p in enumerate(items):
        if not (p.is_valu or p.is_mfma or p.is_vmem or (p.is_salu and ("m0", 0) in p.W)): continue
        stack = [(j, 0) for j in succ(i)]
        seen = {}
        while stack:
            j, d = stack.pop()
            if j >= n or d >= maxback: continue
            if seen.get(j, 99) <= d: continue
            seen[j] = d
            c = items[j]
            k = need(p, c)
            if k > d: errs.add((i, j, f"need {k} have {d}: [{p.text}] -> [{c.text}]"))
            for x in succ(j): stack.append((x, d + c.states))
    return [e[2] for e in sorted(errs)]
```

```python
import struct
WS_Q = 0x000000
WS_K = 0x200000
WS_V = 0x400000
WS_H = 0x600000
WS_O = 0xD00000
WS_WT = 0xF00000
WS_P = 0x1200000
WS_ST = 0x1600000
WS_SIZE = 0x2000000

def f32(x): return "0x%08x" % struct.unpack("<I", struct.pack("<f", x))[0]
LOG2E = 1.4426950408889634
MFMA = "v_mfma_f32_32x32x16_bf16"

class RA:
    def __init__(self, start=0): self.n = start
    def __call__(self, n=1, align=None):
        align = align or (4 if n >= 4 else 2 if n >= 2 else 1)
        self.n = (self.n + align - 1) // align * align
        b = self.n; self.n += n
        return b

def kernel_head(a, name):
    a(f".globl {name}\n.p2align 8\n.type {name},@function")
    a.label(name)

def descriptor(name, nv, ns=102):
    nv4 = (nv + 3) // 4 * 4
    return f""".section .rodata,"a"
.p2align 6
.amdhsa_kernel {name}
  .amdhsa_next_free_vgpr {nv4}
  .amdhsa_next_free_sgpr {ns}
  .amdhsa_accum_offset {nv4}
  .amdhsa_group_segment_fixed_size 0
  .amdhsa_kernarg_size 80
  .amdhsa_user_sgpr_count 2
  .amdhsa_user_sgpr_kernarg_segment_ptr 1
  .amdhsa_system_sgpr_workgroup_id_x 1
.end_amdhsa_kernel
"""

def srd(a, d, lo, size):
    a(f"s_mov_b32 s{d}, s{lo}", f"s_mov_b32 s{d+1}, s{lo+1}", f"s_mov_b32 s{d+2}, {size}", f"s_mov_b32 s{d+3}, 0x00020000")

def interleave(main, fill, start=0):
    out = []
    n = len(main); k = 0
    for i, m in enumerate(main):
        out.append(m)
        if i < start: continue
        rem = n - i
        take = -(-(len(fill) - k) // rem)
        out += fill[k:k + take]; k += take
    out += fill[k:]
    return out
```

```python
from asmlib import Asm, vr, sr
from common import *

STG = 26624
NST = 6
WOFF = 16384
MISC = STG * NST
L_NEGM = MISC
L_RSTD = MISC + 1024
L_CS = MISC + 2048

def gen_k1():
    a = Asm(); name = "k1_kernel"
    kernel_head(a, name)
    SX, SW, SWS, STT = 20, 24, 28, 32
    sW, sWQ, sRB, sCG = 3, 36, 37, 38
    sT0, sSTRIDE, sXOFF, sWOFFS, sSTEP = 39, 40, 41, 42, 43
    sDST, sRD, sCNT, sTMP, sTMP2 = 44, 45, 46, 47, 48
    sXM0, sWM0 = 49, 50
    v = RA(1)
    vlane = v(); vl16 = v(); vt = v(); vt2 = v(); vt3 = v()
    vdx = v(4, 1)
    vdw = v(2, 1)
    bx = v(2, 1); bw = v(); bc = v()
    ax = v(2, 1); aw = v(); ac = v()
    csum = v(8, 4); craw = v(8, 4); ctmp = v(2, 1)
    wt = v(8, 4)
    acc = v(96, 4)
    F = [v(20, 4), v(20, 4)]
    a("s_cmp_ge_u32 s2, 256", "s_cbranch_scc1 k1_end")
    a("s_load_dwordx4 s[4:7], s[0:1], 0", "s_load_dwordx2 s[8:9], s[0:1], 16", "s_load_dwordx4 s[12:15], s[0:1], 32",
      "s_load_dwordx2 s[10:11], s[0:1], 48", "s_load_dwordx2 s[16:17], s[0:1], 72")
    a(f"v_lshrrev_b32 v{vt}, 6, v0", f"v_and_b32 v{vlane}, 63, v0", f"v_lshlrev_b32 v{vl16}, 4, v{vlane}")
    a(f"v_readfirstlane_b32 s{sW}, v{vt}")
    a(f"s_and_b32 s{sRB}, s2, 1", f"s_lshl_b32 s{sRB}, s{sRB}, 2", f"s_lshr_b32 s{sTMP}, s2, 3", f"s_and_b32 s{sTMP}, s{sTMP}, 3", f"s_add_u32 s{sRB}, s{sRB}, s{sTMP}")
    a(f"s_lshr_b32 s{sCG}, s2, 1", f"s_and_b32 s{sCG}, s{sCG}, 3", f"s_lshl_b32 s{sCG}, s{sCG}, 3", f"s_lshr_b32 s{sTMP}, s2, 5", f"s_add_u32 s{sCG}, s{sCG}, s{sTMP}")
    a(f"s_and_b32 s{sWQ}, s{sW}, 3")
    a(f"s_add_u32 s{sT0}, s{sCG}, 32", f"s_add_u32 s{sTMP}, s{sCG}, 4", f"s_cmp_lt_u32 s{sCG}, 16", f"s_cselect_b32 s{sT0}, s{sT0}, s{sTMP}")
    a(f"s_mul_i32 s{sTMP}, s{sCG}, 5", f"s_sub_u32 s{sTMP}, s{sTMP}, 140", f"s_cmp_lt_u32 s{sCG}, 28", f"s_cselect_b32 s{sT0}, s{sT0}, s{sTMP}")
    a(f"v_lshrrev_b32 v{vt}, 2, v{vlane}", f"v_and_b32 v{vt2}, 3, v{vlane}")
    a("s_waitcnt lgkmcnt(0)")
    srd(a, SX, 4, 2048*512*2); srd(a, SWS, 16, WS_SIZE)
    a(f"s_mov_b32 s{SW+3}, 0x00020000", f"s_mov_b32 s{STT+3}, 0x00020000")
    a(f"s_cmp_ge_u32 s{sW}, 4", "s_cbranch_scc1 k1_light")

    def wt_job_loads():
        for n in range(2):
            if n == 1:
                a(f"s_cmp_lg_u32 s{sW}, 0", f"s_cbranch_scc1 k1_wt_skip{a.uid}")
            a(f"s_and_b32 s{sTMP}, s2, 15", f"s_mul_i32 s{sTMP}, s{sTMP}, 9")
            a(f"s_add_u32 s{sTMP}, s{sTMP}, s{sW}" if n == 0 else f"s_add_u32 s{sTMP}, s{sTMP}, 8")
            a(f"s_cmp_lt_u32 s{sTMP}, 32")
            a(f"s_cselect_b32 s{STT}, s8, s10", f"s_cselect_b32 s{STT+1}, s9, s11", f"s_cselect_b32 s{STT+2}, {512*1024}, {1792*1024}" if False else f"s_cselect_b32 s{sTMP2}, 0, 32")
            a(f"s_mov_b32 s{STT+2}, {512*1024}", f"s_cselect_b32 s{STT+2}, s{STT+2}, {1792*1024}")
            a(f"s_sub_u32 s{sTMP}, s{sTMP}, s{sTMP2}", f"s_lshl_b32 s{sTMP}, s{sTMP}, 14")
            a(f"s_lshr_b32 s{sTMP2}, s2, 4", f"s_lshl_b32 s{sTMP2}, s{sTMP2}, 6", f"s_add_u32 s{sTMP}, s{sTMP}, s{sTMP2}")
            a(f"v_lshlrev_b32 v{vt3}, 10, v{vt}", f"v_lshl_add_u32 v{vt3}, v{vt2}, 4, v{vt3}")
            a(f"buffer_load_dwordx4 {vr(wt+4*n,4)}, v{vt3}, s[{STT}:{STT+3}], s{sTMP} offen")
        a.label(f"k1_wt_skip{a.uid}")

    def read_bases():
        a(f"v_and_b32 v{vt3}, 31, v{vlane}", f"v_lshlrev_b32 v{bx}, 6, v{vt3}")
        a(f"v_bfe_u32 v{vt3}, v{vlane}, 2, 2", f"v_lshrrev_b32 v{bw}, 5, v{vlane}", f"v_xor_b32 v{vt3}, v{vt3}, v{bw}")
        a(f"v_lshl_add_u32 v{bx}, v{vt3}, 4, v{bx}", f"s_lshl_b32 s{sTMP}, s{sWQ}, 12", f"v_add_u32 v{bx}, s{sTMP}, v{bx}")
        a(f"v_xor_b32 v{bx+1}, 32, v{bx}")
        a(f"v_lshlrev_b32 v{bw}, 9, v{bw}", f"v_bfe_u32 v{vt3}, v{vlane}, 2, 2", f"v_lshl_add_u32 v{bw}, v{vt3}, 6, v{bw}")
        a(f"v_bfe_u32 v{vt3}, v{vlane}, 4, 1", f"v_lshl_add_u32 v{bw}, v{vt3}, 5, v{bw}", f"v_lshl_add_u32 v{bw}, v{vt2}, 3, v{bw}")
        a(f"v_add_u32 v{bw}, {WOFF}, v{bw}")

    def stats_local():
        d = acc; s1 = acc + 32; s2 = acc + 34; one = acc + 36; vo = acc + 37; vl = acc + 38
        a(f"v_lshrrev_b32 v{vt3}, 3, v{vlane}", f"v_and_b32 v{vo}, 7, v{vlane}", f"v_lshlrev_b32 v{vo}, 4, v{vo}", f"v_lshl_add_u32 v{vo}, v{vt3}, 10, v{vo}")
        a(f"s_lshl_b32 s{sTMP}, s{sW}, 7", f"v_lshl_add_u32 v{vl}, v{vt3}, 2, s{sTMP}", f"v_add_u32 v{vl}, {L_NEGM}, v{vl}")
        a(f"s_lshl_b32 s{sTMP}, s{sRB}, 18", f"s_lshl_b32 s{sTMP2}, s{sW}, 15", f"s_add_u32 s{sTMP}, s{sTMP}, s{sTMP2}")
        a(f"v_mov_b32 v{one}, 0x3f803f80", f"s_mov_b32 s{sCNT}, 3")
        lab = f"k1_stats{a.uid}"
        a.label(lab)
        for i in range(8):
            a(f"buffer_load_dwordx4 {vr(d+4*i,4)}, v{vo}, s[{SX}:{SX+3}], s{sTMP} offen offset:{128*i}")
        for r in (s1, s1+1, s2, s2+1): a(f"v_mov_b32 v{r}, 0")
        a("s_waitcnt vmcnt(0)")
        for i in range(32):
            a(f"v_dot2c_f32_bf16 v{s1+(i&1)}, v{d+i}, v{one}", f"v_dot2c_f32_bf16 v{s2+(i&1)}, v{d+i}, v{d+i}")
        a("s_nop 2")
        a(f"v_add_f32 v{s1}, v{s1}, v{s1+1}", f"v_add_f32 v{s2}, v{s2}, v{s2+1}")
        for m in ("quad_perm:[1,0,3,2]", "quad_perm:[2,3,0,1]", "row_half_mirror"):
            a("s_nop 0")
            a(f"v_add_f32_dpp v{s1}, v{s1}, v{s1} {m} row_mask:0xf bank_mask:0xf" if False else f"v_mov_b32_dpp v{s1+1}, v{s1} {m} row_mask:0xf bank_mask:0xf")
            a(f"v_mov_b32_dpp v{s2+1}, v{s2} {m} row_mask:0xf bank_mask:0xf")
            a(f"v_add_f32 v{s1}, v{s1}, v{s1+1}", f"v_add_f32 v{s2}, v{s2}, v{s2+1}")
        a(f"v_mul_f32 v{s1}, {f32(1/512)}, v{s1}", f"v_mul_f32 v{s2}, {f32(1/512)}, v{s2}")
        a(f"v_fma_f32 v{s2}, -v{s1}, v{s1}, v{s2}", f"v_max_f32 v{s2}, 0, v{s2}")
        a(f"v_cvt_pk_bf16_f32 v{s1+1}, v{s1}, v{s2}")
        a(f"v_and_b32 v{s2}, 0xffff0000, v{s1+1}", f"v_lshlrev_b32 v{s1}, 16, v{s1+1}")
        a(f"v_add_f32 v{s2}, {f32(1e-5)}, v{s2}", f"v_cvt_pk_bf16_f32 v{s2}, v{s2}, v{s2}", f"v_lshlrev_b32 v{s2}, 16, v{s2}")
        a(f"v_sqrt_f32 v{s2}, v{s2}", f"v_sub_f32 v{s1}, 0, v{s1}", f"v_cvt_pk_bf16_f32 v{s2}, v{s2}, v{s2}", f"v_lshlrev_b32 v{s2}, 16, v{s2}")
        a(f"v_rcp_f32 v{s2}, v{s2}", "s_nop 0")
        a(f"ds_write_b32 v{vl}, v{s1}", f"ds_write_b32 v{vl}, v{s2} offset:1024")
        a(f"v_add_u32 v{vl}, 32, v{vl}", f"s_add_u32 s{sTMP}, s{sTMP}, 8192")
        a(f"s_sub_u32 s{sCNT}, s{sCNT}, 1", f"s_cbranch_scc0 {lab}")

    def frag_reads(Fx, tiles, s):
        r = [f"ds_read_b128 {vr(Fx+4*b,4)}, v{ax+s} offset:{2048*b}" for b in range(2)]
        for i, t in enumerate(tiles):
            for hf in range(2):
                r.append(f"ds_read_b64_tr_b16 {vr(Fx+8+4*i+2*hf,2)}, v{aw} offset:{t*2048 + s*1024 + 256*hf}")
        return r
    def mfmas(Fx, tiles, vtile):
        r = []
        for i, t in enumerate(tiles):
            for b in range(2):
                d = acc + 16*(2*i+b)
                w_, x_ = vr(Fx+8+4*i, 4), vr(Fx+4*b, 4)
                A, B = (x_, w_) if (vtile and i == 0) else (w_, x_)
                r.append(f"{MFMA} {vr(d,16)}, {A}, {B}, {vr(d,16)}")
        return r
    def set_addr():
        return [f"v_add_u32 v{ax}, s{sRD}, v{bx}", f"v_add_u32 v{ax+1}, s{sRD}, v{bx+1}", f"v_add_u32 v{aw}, s{sRD}, v{bw}", f"v_add_u32 v{ac}, s{sRD}, v{bc}"]
    def dma(heavy):
        if heavy:
            return [f"s_add_u32 m0, s{sDST}, s{sWM0}",
                    f"s_mov_b32 exec_hi, 0\nbuffer_load_dwordx4 v{vdw}, s[{SW}:{SW+3}], s{sWOFFS} offen lds\ns_mov_b32 exec_hi, -1",
                    f"s_add_u32 s{sWOFFS}, s{sWOFFS}, s{sSTEP}"]
        r = [f"s_add_u32 m0, s{sDST}, s{sXM0}", "s_nop 0"]
        r += [f"buffer_load_dwordx4 v{vdx+q}, s[{SX}:{SX+3}], s{sXOFF} offen offset:{1024*q} lds" for q in range(4)]
        r += [f"s_add_u32 m0, s{sDST}, s{sWM0}", f"s_add_u32 s{sXOFF}, s{sXOFF}, 64"]
        r += [f"buffer_load_dwordx4 v{vdw+q}, s[{SW}:{SW+3}], s{sWOFFS} offen offset:{1024*q} lds" for q in range(2)]
        r += [f"s_add_u32 s{sWOFFS}, s{sWOFFS}, s{sSTEP}"]
        return r
    def colsum_reads(heavy):
        if heavy: return [f"ds_read_b64 {vr(craw,2)}, v{ac}"]
        return [f"ds_read_b128 {vr(craw,4)}, v{ac}", f"ds_read_b128 {vr(craw+4,4)}, v{ac} offset:1024"]
    def colsum_ops(heavy):
        r = []
        for i in range(2 if heavy else 8):
            k = (i % 4) * 2
            r += [f"v_lshlrev_b32 v{ctmp}, 16, v{craw+i}", f"v_and_b32 v{ctmp+1}, 0xffff0000, v{craw+i}",
                  f"v_add_f32 v{csum+k}, v{csum+k}, v{ctmp}", f"v_add_f32 v{csum+k+1}, v{csum+k+1}, v{ctmp+1}"]
        return r

    def prologue_dma(heavy):
        a(f"s_mov_b32 s{sDST}, 0", f"s_mov_b32 s{sCNT}, {NST-1}")
        lab = f"k1_pro{a.uid}"
        a.label(lab)
        for l in dma(heavy): a(l)
        a(f"s_add_u32 s{sDST}, s{sDST}, {STG}", f"s_sub_u32 s{sCNT}, s{sCNT}, 1", f"s_cbranch_scc0 {lab}")

    def mainloop(heavy, vtile, tag):
        tiles = [0, 1, 2] if heavy else [3, 4]
        nd = 1 if heavy else 6
        nrd = 2 + 2*len(tiles)
        a(".p2align 6")
        a.label(tag)
        rd = frag_reads(F[1], tiles, 1) + colsum_reads(heavy)
        m0 = mfmas(F[0], tiles, vtile)
        a("s_waitcnt lgkmcnt(0)")
        for l in interleave(m0, rd): a(l)
        a(f"s_mov_b32 s{sDST}, s{sRD}", f"s_add_u32 s{sRD}, s{sRD}, {STG}", f"s_cmp_eq_u32 s{sRD}, {STG*NST}", f"s_cselect_b32 s{sRD}, 0, s{sRD}")
        a(f"s_cmp_lt_u32 s{sCNT}, {NST}", f"s_cselect_b32 s{SX+2}, 0, s{SX+2}", f"s_cselect_b32 s{SW+2}, 0, s{SW+2}")
        for l in set_addr(): a(l)
        a(f"s_waitcnt vmcnt({(NST-2)*nd})", "s_waitcnt lgkmcnt(0)", "s_barrier")
        m1 = mfmas(F[1], tiles, vtile)
        fill = frag_reads(F[0], tiles, 0) + dma(heavy) + colsum_ops(heavy)
        for l in interleave(m1, fill): a(l)
        a(f"s_sub_u32 s{sCNT}, s{sCNT}, 1", f"s_cbranch_scc0 {tag}")

    def pre_loop(heavy):
        tiles = [0, 1, 2] if heavy else [3, 4]
        nd = 1 if heavy else 6
        read_bases()
        a(f"v_mov_b32 v{csum}, 0", f"v_lshlrev_b32 v{vt3}, 2, v0", f"v_add_u32 v{vt3}, {L_CS}, v{vt3}")
        if heavy: a(f"ds_write_b32 v{vt3}, v{csum}")
        stats_local()
        for i in range(1, 8): a(f"v_mov_b32 v{csum+i}, 0")
        for i in range(32*len(tiles)): a(f"v_mov_b32 v{acc+i}, 0")
        a(f"s_mov_b32 s{sRD}, 0")
        for l in set_addr(): a(l)
        a(f"s_waitcnt vmcnt({(NST-1)*nd})", "s_waitcnt lgkmcnt(0)", "s_barrier")
        for l in frag_reads(F[0], tiles, 0): a(l)
        a(f"s_mov_b32 s{sCNT}, 15")

    def colsum_finish(heavy):
        n = 4 if heavy else 8
        shifts = ("row_shr:8",) if heavy else ("row_shr:4", "row_shr:8")
        for sh in shifts:
            a("s_nop 1")
            for i in range(n):
                a(f"v_add_f32_dpp v{csum+i}, v{csum+i}, v{csum+i} {sh} row_mask:0xf bank_mask:0xf")
        if heavy:
            a(f"v_and_b32 v{vt3}, 7, v{vlane}", f"v_lshlrev_b32 v{vt3}, 4, v{vt3}", f"v_add_u32 v{vt3}, {L_CS}, v{vt3}")
            a("s_mov_b32 exec_lo, 0xff00ff00", "s_mov_b32 exec_hi, 0xff00ff00")
        else:
            a(f"s_lshl_b32 s{sTMP}, s{sWQ}, 7", f"s_add_u32 s{sTMP}, s{sTMP}, {L_CS + 128}", f"v_lshl_add_u32 v{vt3}, v{vt2}, 5, s{sTMP}")
            a("s_mov_b32 exec_lo, 0xf000f000", "s_mov_b32 exec_hi, 0xf000f000")
        for i in range(n): a(f"ds_add_f32 v{vt3}, v{csum+i} offset:{4*i}")
        a("s_mov_b64 exec, -1")
        a("s_waitcnt vmcnt(0)", "s_waitcnt lgkmcnt(0)", "s_barrier")

    cs = [F[0], F[1]]
    nm = [csum, csum+1]; rs = [csum+2, csum+3]; k1 = [csum+4, csum+5]; k2 = [csum+6, csum+7]
    et = craw
    vcs = ax; vst = ax+1; vo = aw
    def ep_common():
        a(f"v_and_b32 v{vt3}, 31, v{vlane}", f"s_lshl_b32 s{sTMP}, s{sWQ}, 8", f"v_lshl_add_u32 v{vst}, v{vt3}, 2, s{sTMP}", f"v_add_u32 v{vst}, {L_NEGM}, v{vst}")
        for b in range(2):
            a(f"ds_read_b32 v{nm[b]}, v{vst} offset:{128*b}", f"ds_read_b32 v{rs[b]}, v{vst} offset:{1024+128*b}")
        a(f"v_lshrrev_b32 v{vcs}, 5, v{vlane}", f"v_lshlrev_b32 v{vcs}, 4, v{vcs}", f"v_add_u32 v{vcs}, {L_CS}, v{vcs}")
        a(f"s_lshl_b32 s{sXOFF}, s{sRB}, 3", f"s_lshl_b32 s{sTMP}, s{sWQ}, 1", f"s_add_u32 s{sXOFF}, s{sXOFF}, s{sTMP}")
    def load_cs(dst, tile):
        for g in range(4): a(f"ds_read_b128 {vr(dst+4*g,4)}, v{vcs} offset:{tile*128 + 32*g}")
    def ep_plain(i, tile, tadd):
        load_cs(cs[0], tile)
        a(f"s_add_u32 s{sTMP}, s{sT0}, {tadd}", f"s_cmp_lt_u32 s{sTMP}, 16", f"s_mov_b32 s{sTMP2}, {f32(0.25*LOG2E)}", f"s_cselect_b32 s{sTMP2}, s{sTMP2}, 1.0")
        a(f"s_lshl_b32 s{sTMP}, s{sTMP}, 17", f"s_lshl_b32 s{sDST}, s{sXOFF}, 10", f"s_add_u32 s{sTMP}, s{sTMP}, s{sDST}", f"s_add_u32 s{sDST}, s{sTMP}, 0x10000")
        a("s_waitcnt lgkmcnt(0)")
        for b in range(2):
            d = acc + 16*(2*i+b)
            a(f"v_mul_f32 v{k1[b]}, s{sTMP2}, v{rs[b]}")
            for r in range(16): a(f"v_fma_f32 v{d+r}, v{nm[b]}, v{cs[0]+r}, v{d+r}")
            for r in range(16): a(f"v_mul_f32 v{d+r}, v{d+r}, v{k1[b]}")
            for r in range(8): a(f"v_cvt_pk_bf16_f32 v{d+r}, v{d+2*r}, v{d+2*r+1}")
            a(f"buffer_store_dwordx4 {vr(d,4)}, v{vl16}, s[{SWS}:{SWS+3}], s{sTMP} offen offset:{1024*b}")
            a(f"buffer_store_dwordx4 {vr(d+4,4)}, v{vl16}, s[{SWS}:{SWS+3}], s{sDST} offen offset:{1024*b}")
    def ep_v():
        a(f"v_and_b32 v{vt3}, 31, v{vlane}", f"v_lshlrev_b32 v{vt3}, 2, v{vt3}", f"v_add_u32 v{vt3}, {L_CS}, v{vt3}", f"ds_read_b32 v{et}, v{vt3}")
        a(f"s_lshl_b32 s{sTMP}, s{sWQ}, 8", f"s_add_u32 s{sTMP}, s{sTMP}, {L_NEGM - L_CS}", f"v_add_u32 v{vt3}, s{sTMP}, v{vcs}")
        a(f"v_bfe_u32 v{vo}, v{vlane}, 4, 1", f"v_lshlrev_b32 v{vo}, 16, v{vo}", f"v_lshrrev_b32 v{et+1}, 5, v{vlane}", f"v_lshl_add_u32 v{vo}, v{et+1}, 9, v{vo}")
        a(f"v_and_b32 v{et+1}, 15, v{vlane}", f"v_lshl_add_u32 v{vo}, v{et+1}, 4, v{vo}")
        a(f"s_lshl_b32 s{sTMP}, s{sT0}, 17", f"s_lshl_b32 s{sDST}, s{sXOFF}, 10", f"s_add_u32 s{sTMP}, s{sTMP}, s{sDST}")
        for b in range(2):
            d = acc + 16*b
            for g in range(4):
                a(f"ds_read_b128 {vr(cs[0]+4*g,4)}, v{vt3} offset:{128*b + 32*g}", f"ds_read_b128 {vr(cs[1]+4*g,4)}, v{vt3} offset:{1024 + 128*b + 32*g}")
            a("s_waitcnt lgkmcnt(0)")
            for r in range(16): a(f"v_fma_f32 v{d+r}, v{cs[0]+r}, v{et}, v{d+r}")
            for r in range(16): a(f"v_mul_f32 v{d+r}, v{d+r}, v{cs[1]+r}")
            for r in range(8): a(f"v_cvt_pk_bf16_f32 v{d+r}, v{d+2*r}, v{d+2*r+1}")
            a(f"buffer_store_dwordx4 {vr(d,4)}, v{vo}, s[{SWS}:{SWS+3}], s{sTMP} offen offset:{1024*b}")
            a(f"buffer_store_dwordx4 {vr(d+4,4)}, v{vo}, s[{SWS}:{SWS+3}], s{sTMP} offen offset:{1024*b+256}")
    def ep_gu(i, tile, pair):
        load_cs(cs[0], tile); load_cs(cs[1], tile+1)
        a(f"s_mul_i32 s{sTMP}, s{sXOFF}, 112", f"s_lshl_b32 s{sTMP2}, s{sCG}, 2", f"s_add_u32 s{sTMP}, s{sTMP}, s{sTMP2}", f"s_lshl_b32 s{sTMP}, s{sTMP}, 10")
        a(f"s_add_u32 s{sTMP}, s{sTMP}, {WS_H + 2048*pair}", f"s_add_u32 s{sDST}, s{sTMP}, {112*1024}")
        a("s_waitcnt lgkmcnt(0)")
        for b in range(2):
            a(f"v_mul_f32 v{k1[b]}, {f32(-LOG2E)}, v{rs[b]}", f"v_mul_f32 v{k2[b]}, v{rs[b]}, v{rs[b]}", f"v_rcp_f32 v{k2[b]}, v{k2[b]}")
        for b in range(2):
            g_ = acc + 16*(2*i+b); u_ = acc + 16*(2*(i+1)+b)
            for r0 in range(0, 16, 8):
                R = range(r0, r0+8)
                for r in R: a(f"v_fma_f32 v{g_+r}, v{nm[b]}, v{cs[0]+r}, v{g_+r}")
                for r in R: a(f"v_mul_f32 v{et+r-r0}, v{g_+r}, v{k1[b]}")
                for r in R:
                    a(f"v_exp_f32 v{et+r-r0}, v{et+r-r0}")
                    a(f"v_fma_f32 v{u_+r}, v{nm[b]}, v{cs[1]+r}, v{u_+r}")
                for r in R: a(f"v_fma_f32 v{et+r-r0}, v{et+r-r0}, v{k2[b]}, v{k2[b]}")
                for r in R:
                    a(f"v_rcp_f32 v{et+r-r0}, v{et+r-r0}")
                    a(f"v_mul_f32 v{g_+r}, v{g_+r}, v{u_+r}")
                for r in R: a(f"v_mul_f32 v{g_+r}, v{g_+r}, v{et+r-r0}")
                for r in range(4): a(f"v_cvt_pk_bf16_f32 v{u_+r0+r}, v{g_+r0+2*r}, v{g_+r0+2*r+1}")
                a(f"buffer_store_dwordx4 {vr(u_+r0,4)}, v{vl16}, s[{SWS}:{SWS+3}], s{sDST if b else sTMP} offen offset:{1024*(r0//8)}")
    def wt_job_finish():
        for n in range(2):
            if n == 1:
                a(f"s_cmp_lg_u32 s{sW}, 0", "s_cbranch_scc1 k1_end")
            a(f"s_lshl_b32 s{sTMP}, s{sW}, 10", f"v_add_u32 v{vt3}, s{sTMP}, v{vl16}")
            a(f"ds_write_b128 v{vt3}, {vr(wt+4*n,4)}")
            a(f"v_lshrrev_b32 v{vt}, 5, v{vlane}", f"v_lshlrev_b32 v{vt}, 8, v{vt}", f"v_sub_u32 v{vt}, v{bw}, v{vt}")
            a(f"s_sub_u32 s{sTMP}, s{sTMP}, {WOFF}", f"v_add_u32 v{vt}, s{sTMP}, v{vt}")
            a("s_waitcnt lgkmcnt(0)")
            a(f"ds_read_b64_tr_b16 {vr(wt+4*n,2)}, v{vt}", f"ds_read_b64_tr_b16 {vr(wt+4*n+2,2)}, v{vt} offset:512")
            a(f"s_mul_i32 s{sTMP}, s2, 9")
            a(f"s_add_u32 s{sTMP}, s{sTMP}, s{sW}" if n == 0 else f"s_add_u32 s{sTMP}, s{sTMP}, 8")
            a(f"s_lshl_b32 s{sTMP}, s{sTMP}, 10", f"s_add_u32 s{sTMP}, s{sTMP}, {WS_WT}")
            a("s_waitcnt lgkmcnt(0)")
            a(f"buffer_store_dwordx4 {vr(wt+4*n,4)}, v{vl16}, s[{SWS}:{SWS+3}], s{sTMP} offen")

    a.uid = "h"
    a(f"s_mov_b32 s{SW}, s6", f"s_mov_b32 s{SW+1}, s7", f"s_mov_b32 s{SW+2}, {512*3072}")
    a(f"s_mov_b32 s{sSTEP}, {32*3072}")
    a(f"s_mul_i32 s{sWOFFS}, s{sWQ}, {8*3072}", f"s_lshl_b32 s{sTMP}, s{sT0}, 6", f"s_add_u32 s{sWOFFS}, s{sWOFFS}, s{sTMP}")
    a(f"v_mul_u32_u24 v{vdw}, 3072, v{vt}", f"v_lshl_add_u32 v{vdw}, v{vt2}, 4, v{vdw}")
    a(f"s_lshl_b32 s{sWM0}, s{sWQ}, 9", f"s_add_u32 s{sWM0}, s{sWM0}, {WOFF}")
    wt_job_loads()
    prologue_dma(True)
    a(f"v_lshlrev_b32 v{bc}, 3, v{vlane}", f"v_add_u32 v{bc}, s{sWM0}, v{bc}")
    pre_loop(True)
    a(f"s_cmp_lt_u32 s{sCG}, 16", "s_cbranch_scc1 k1_loop_hv")
    mainloop(True, False, "k1_loop_h")
    a("s_branch k1_h_done")
    mainloop(True, True, "k1_loop_hv")
    a.label("k1_h_done")
    colsum_finish(True)
    ep_common()
    a(f"s_cmp_lt_u32 s{sCG}, 28", "s_cbranch_scc1 k1_h_gu")
    ep_plain(1, 1, 1); ep_plain(2, 2, 2)
    a("s_branch k1_h_t0")
    a.label("k1_h_gu")
    ep_gu(1, 1, 0)
    a.label("k1_h_t0")
    a(f"s_cmp_lt_u32 s{sCG}, 16", "s_cbranch_scc1 k1_h_v")
    ep_plain(0, 0, 0)
    a("s_branch k1_wt")
    a.label("k1_h_v")
    ep_v()
    a("s_branch k1_wt")
    a.label("k1_light")
    a.uid = "l"
    a(f"s_bitcmp1_b32 s{sWQ}, 0", f"s_cselect_b32 s{SW}, s14, s12", f"s_cselect_b32 s{SW+1}, s15, s13")
    a(f"s_lshl_b32 s{sWOFFS}, s{sCG}, 7", f"s_lshr_b32 s{sTMP}, s{sWQ}, 1", f"s_lshl_b32 s{sTMP}, s{sTMP}, 6", f"s_add_u32 s{sWOFFS}, s{sWOFFS}, s{sTMP}")
    a(f"s_add_u32 s{sTMP}, s{sT0}, s{sWQ}", f"s_add_u32 s{sTMP}, s{sTMP}, 1", f"s_lshl_b32 s{sTMP}, s{sTMP}, 6")
    a(f"s_mov_b32 s{sSTRIDE}, 3584")
    a(f"s_cmp_lt_u32 s{sCG}, 28")
    a(f"s_cselect_b32 s{SW}, s{SW}, s6", f"s_cselect_b32 s{SW+1}, s{SW+1}, s7", f"s_cselect_b32 s{sWOFFS}, s{sWOFFS}, s{sTMP}", f"s_cselect_b32 s{sSTRIDE}, s{sSTRIDE}, 3072")
    a(f"s_lshl_b32 s{SW+2}, s{sSTRIDE}, 9", f"s_lshl_b32 s{sSTEP}, s{sSTRIDE}, 5")
    a(f"v_mul_u32_u24 v{vdw}, s{sSTRIDE}, v{vt}", f"v_lshl_add_u32 v{vdw}, v{vt2}, 4, v{vdw}")
    a(f"s_lshl_b32 s{sTMP}, s{sSTRIDE}, 4", f"s_sub_u32 s{sTMP}, s{sTMP}, 1024", f"v_add_u32 v{vdw+1}, s{sTMP}, v{vdw}")
    a(f"s_lshl_b32 s{sWM0}, s{sWQ}, 11", f"s_add_u32 s{sWM0}, s{sWM0}, {WOFF + 2048}")
    a(f"v_lshrrev_b32 v{vt3}, 4, v{vlane}", f"v_xor_b32 v{vt3}, v{vt3}, v{vt2}", f"v_lshlrev_b32 v{vt3}, 4, v{vt3}", f"v_lshl_add_u32 v{vdx}, v{vt}, 10, v{vt3}")
    for q in range(1, 4): a(f"v_add_u32 v{vdx+q}, {q*(16384-1024)}, v{vdx}")
    a(f"s_lshl_b32 s{sXOFF}, s{sRB}, 18", f"s_lshl_b32 s{sTMP}, s{sWQ}, 16", f"s_add_u32 s{sXOFF}, s{sXOFF}, s{sTMP}")
    a(f"s_lshl_b32 s{sXM0}, s{sWQ}, 12")
    wt_job_loads()
    prologue_dma(False)
    a(f"v_add_u32 v{bc}, s{sWM0}, v{vl16}")
    pre_loop(False)
    mainloop(False, False, "k1_loop_l")
    colsum_finish(False)
    ep_common()
    a(f"s_cmp_lt_u32 s{sCG}, 28", "s_cbranch_scc1 k1_l_gu")
    ep_plain(0, 3, 3); ep_plain(1, 4, 4)
    a("s_branch k1_wt")
    a.label("k1_l_gu")
    ep_gu(0, 3, 1)
    a.label("k1_wt")
    wt_job_finish()
    a.label("k1_end")
    a("s_endpgm")
    return a.text(), descriptor(name, v.n), f"; @launch kernel={name} grid=(256,1,1) block=(512,1,1) lds=163840"
```

```python
import sys, struct
from asmlib import Asm, vr, sr, check_hazards

NAME = "parallel_sum__softmax_full_mha__swiglu_ffn__prompt"
from common import *

def gen_k3():
    a = Asm(); name = "k3_kernel"
    kernel_head(a, name)
    RS = 272
    PT = 64 * RS
    v = RA(1)
    vlane16 = v(); vt = v(); vt2 = v(); vwr = v(); vrd = v(); vxo = v()
    acc = v(64, 4)
    fr = v(128, 4)
    pp = v(16, 4); xx = v(8, 4)
    a("s_cmp_ge_u32 s2, 256", "s_cbranch_scc1 k3_end")
    a("s_load_dwordx2 s[4:5], s[0:1], 0", "s_load_dwordx2 s[6:7], s[0:1], 56", "s_load_dwordx2 s[8:9], s[0:1], 72")
    a(f"v_lshrrev_b32 v{vt}, 6, v0", f"v_and_b32 v{vlane16}, 63, v0", f"v_lshlrev_b32 v{vlane16}, 4, v{vlane16}")
    a(f"v_readfirstlane_b32 s3, v{vt}")
    a("s_and_b32 s30, s2, 7", "s_lshl_b32 s30, s30, 2", "s_lshr_b32 s31, s2, 3", "s_and_b32 s31, s31, 3", "s_add_u32 s30, s30, s31")
    a("s_lshr_b32 s31, s2, 5")
    a("s_lshl_b32 s32, s30, 16", "s_lshl_b32 s33, s3, 13", "s_add_u32 s32, s32, s33", f"s_add_u32 s32, s32, {WS_O}")
    a("s_add_u32 s34, s32, 0x8000")
    a(f"s_mul_i32 s36, s31, {2*144*1024}", "s_add_u32 s36, s36, s33", f"s_add_u32 s36, s36, {WS_WT}", f"s_add_u32 s38, s36, {144*1024}")
    for s in (32, 34, 36, 38): a(f"s_add_u32 s{s+1}, s{s}, 4096")
    a("s_lshl_b32 s40, s2, 14", f"s_add_u32 s40, s40, {WS_P}")
    a("s_waitcnt lgkmcnt(0)")
    srd(a, 12, 8, WS_SIZE); srd(a, 16, 4, 2048*512*2); srd(a, 20, 6, 2048*512*2)
    for ks in range(8):
        for j, s in enumerate((32, 34, 36, 38)):
            a(f"buffer_load_dwordx4 {vr(fr+16*ks+4*j,4)}, v{vlane16}, s[12:15], s{s + ks//4} offen offset:{(ks%4)*1024}")
    a(f"v_lshlrev_b32 v{vt}, 4, v0")
    for p in range(4):
        a(f"s_add_u32 s41, s40, {p*4096}")
        a(f"buffer_load_dwordx4 {vr(pp+4*p,4)}, v{vt}, s[12:15], s41 offen")
    a(f"v_lshrrev_b32 v{vt}, 3, v0", f"v_and_b32 v{vt2}, 7, v0", f"v_lshlrev_b32 v{vxo}, 10, v{vt}", f"v_lshl_add_u32 v{vxo}, v{vt2}, 4, v{vxo}")
    a("s_lshl_b32 s42, s30, 16", "s_lshl_b32 s43, s31, 7", "s_add_u32 s42, s42, s43", "s_add_u32 s43, s42, 0x8000")
    a(f"buffer_load_dwordx4 {vr(xx,4)}, v{vxo}, s[16:19], s42 offen", f"buffer_load_dwordx4 {vr(xx+4,4)}, v{vxo}, s[16:19], s43 offen")
    a(f"v_mul_u32_u24 v{vrd}, {RS}, v{vt}", f"v_lshl_add_u32 v{vrd}, v{vt2}, 5, v{vrd}")
    a(f"v_and_b32 v{vt}, 31, v0", f"v_mul_u32_u24 v{vwr}, {RS}, v{vt}", f"v_bfe_u32 v{vt}, v0, 5, 1", f"v_lshl_add_u32 v{vwr}, v{vt}, 4, v{vwr}")
    a(f"s_mul_i32 s44, s3, {PT}", f"v_add_u32 v{vwr}, s44, v{vwr}")
    for ks in range(8):
        a(f"s_waitcnt vmcnt({6 + 4*(7-ks)})")
        f = fr + 16*ks
        for b in range(2):
            for t in range(2):
                d = acc + 16*(2*b+t)
                c = "0" if ks == 0 else vr(d, 16)
                a(f"{MFMA} {vr(d,16)}, {vr(f+8+4*b,4)}, {vr(f+4*t,4)}, {c}")
    a("s_waitcnt vmcnt(0)")
    for r in range(2):
        for i in range(4):
            x = xx + 4*r + i
            p0 = pp + 8*r + 2*i
            a(f"v_lshlrev_b32 v{vt}, 16, v{x}", f"v_and_b32 v{vt2}, 0xffff0000, v{x}")
            a(f"v_add_f32 v{p0}, v{p0}, v{vt}", f"v_add_f32 v{p0+1}, v{p0+1}, v{vt2}")
    for b in range(2):
        for t in range(2):
            d = acc + 16*(2*b+t)
            for g in range(4):
                a(f"ds_write_b128 v{vwr}, {vr(d+4*g,4)} offset:{t*32*RS + (32*b+8*g)*4}")
    a("s_waitcnt lgkmcnt(0)", "s_barrier")
    rd = fr
    for w in range(4):
        for r in range(2):
            for hf in range(2):
                off = w*PT + r*32*RS + hf*16
                if off > 65535:
                    continue
                a(f"ds_read_b128 {vr(rd+16*w+8*r+4*hf,4)}, v{vrd} offset:{off}")
    assert 3*PT + 32*RS + 16 <= 65535
    for w in range(4):
        a(f"s_waitcnt lgkmcnt({12-4*w})")
        for i in range(0, 16, 2):
            a(f"v_pk_add_f32 {vr(pp+i,2)}, {vr(pp+i,2)}, {vr(rd+16*w+i,2)}")
    for i in range(8):
        a(f"v_cvt_pk_bf16_f32 v{xx+i}, v{pp+2*i}, v{pp+2*i+1}")
    a(f"buffer_store_dwordx4 {vr(xx,4)}, v{vxo}, s[20:23], s42 offen", f"buffer_store_dwordx4 {vr(xx+4,4)}, v{vxo}, s[20:23], s43 offen")
    a.label("k3_end")
    a("s_endpgm")
    return a.text(), descriptor(name, v.n), f"; @launch kernel={name} grid=(256,1,1) block=(256,1,1) lds={4*PT}"

DELTA = 96.0
def gen_k2():
    a = Asm(); name = "k2_kernel"
    kernel_head(a, name)
    RS = 272
    RED = 131072
    CNT = RED + 64*RS
    a("s_cmp_ge_u32 s2, 256", "s_cbranch_scc1 k2_end")
    a("s_load_dwordx2 s[8:9], s[0:1], 72")
    a("v_lshrrev_b32 v1, 6, v0", "v_and_b32 v2, 63, v0", "v_lshlrev_b32 v3, 4, v2")
    a("v_readfirstlane_b32 s3, v1")
    a("s_and_b32 s30, s2, 31", "s_lshr_b32 s31, s2, 5")
    a("s_lshl_b32 s32, s30, 16")
    a("s_waitcnt lgkmcnt(0)")
    srd(a, 12, 8, WS_SIZE)
    a("s_cmp_ge_u32 s3, 4", "s_cbranch_scc1 k2_gemm")
    v = RA(4)
    vaddr = v(); vt = v(); vt2 = v(); vmx = v(2, 1)
    Q = [v(4), v(4)]; NM = [v(16, 4), v(16, 4)]; O = [v(16, 4), v(16, 4)]; S = [v(16, 4), v(16, 4)]; P = [v(8, 4), v(8, 4)]
    Kb = [v(4), v(4)]; Vb = [v(8, 4), v(8, 4)]
    a("s_setprio 2")
    a("s_lshl_b32 s33, s31, 3", "s_lshl_b32 s34, s3, 1", "s_add_u32 s33, s33, s34")
    a("s_lshl_b32 s34, s33, 10", "s_add_u32 s34, s34, s32")
    a(f"buffer_load_dwordx4 {vr(Q[0],4)}, v3, s[12:15], s34 offen", f"buffer_load_dwordx4 {vr(Q[1],4)}, v3, s[12:15], s34 offen offset:1024")
    a("s_lshl_b32 s35, s33, 15", "s_lshl_b32 s36, s30, 10", "s_add_u32 s35, s35, s36", f"s_add_u32 s35, s35, {WS_O}", "s_add_u32 s36, s35, 0x8000")
    a("s_mov_b32 s40, 0x0000ffff", "s_mov_b32 s41, 0x0000ffff")
    a("s_mov_b32 s44, 0")
    a("s_mov_b32 s45, 0")
    a(f"s_mov_b32 s46, {f32(DELTA)}")
    a("s_barrier")
    a("s_waitcnt vmcnt(0)")
    a.label("k2_pass")
    a(f"v_mov_b32 v{vaddr}, v3", f"v_mov_b32 v{vmx}, 0xff800000", f"v_mov_b32 v{vmx+1}, 0xff800000")
    a.label("k2_maxloop")
    a(f"ds_read_b128 {vr(Kb[0],4)}, v{vaddr}", f"ds_read_b128 {vr(Kb[1],4)}, v{vaddr} offset:2048")
    a(f"v_add_u32 v{vaddr}, 4096, v{vaddr}")
    a("s_waitcnt lgkmcnt(0)")
    a(f"{MFMA} {vr(S[0],16)}, {vr(Kb[0],4)}, {vr(Q[0],4)}, 0", f"{MFMA} {vr(S[1],16)}, {vr(Kb[0],4)}, {vr(Q[1],4)}, 0")
    a(f"{MFMA} {vr(O[0],16)}, {vr(Kb[1],4)}, {vr(Q[0],4)}, 0", f"{MFMA} {vr(O[1],16)}, {vr(Kb[1],4)}, {vr(Q[1],4)}, 0")
    a("s_nop 8")
    for blk in (S, O):
        for q in range(2):
            for i in range(0, 16, 2):
                a(f"v_max3_f32 v{vmx+q}, v{blk[q]+i}, v{blk[q]+i+1}, v{vmx+q}")
    a("s_sub_u32 s45, s45, 1", "s_cbranch_scc0 k2_maxloop")
    a(f"v_mov_b32 v{vaddr}, v3")
    for b in Vb:
        for i in range(8): a(f"v_mov_b32 v{b+i}, 0x3f803f80")
    a(f"ds_read_b128 {vr(Kb[0],4)}, v{vaddr}")
    a("s_mov_b64 exec, s[40:41]")
    a(f"ds_read_b128 {vr(Vb[0],4)}, v{vaddr} offset:1024", f"ds_read_b128 {vr(Vb[0]+4,4)}, v{vaddr} offset:1280")
    a("s_mov_b64 exec, -1")
    for q in range(2):
        a(f"v_mov_b32 v{vt+q}, v{vmx+q}")
    a("s_nop 1")
    for q in range(2):
        a(f"v_permlane32_swap_b32 v{vmx+q}, v{vt+q}")
    for q in range(2):
        a(f"v_max_f32 v{vmx+q}, v{vmx+q}, v{vt+q}")
    for q in range(2):
        a(f"v_add_f32 v{vmx+q}, s46, v{vmx+q}")
    for q in range(2):
        for i in range(16): a(f"v_sub_f32 v{NM[q]+i}, 0, v{vmx+q}")
    for q in range(2):
        for i in range(16): a(f"v_mov_b32 v{O[q]+i}, 0")
    for i in range(8): a(f"v_mov_b32 v{P[1]+i}, 0")
    a("s_waitcnt lgkmcnt(0)")
    a(f"{MFMA} {vr(S[0],16)}, {vr(Kb[0],4)}, {vr(Q[0],4)}, {vr(NM[0],16)}")
    a("s_mov_b32 s42, 2", "s_mov_b32 s43, 0")
    a("s_nop 8")
    def phase(Sx, Px, mf, extra):
        seq = []
        for i in range(16):
            seq.append(f"v_exp_f32 v{Sx+i}, v{Sx+i}")
            if i % 2 == 1 and i >= 3:
                j = (i-3)//2
                seq.append(f"v_cvt_pk_bf16_f32 v{Px+j}, v{Sx+2*j}, v{Sx+2*j+1}")
        seq.append(f"v_cvt_pk_bf16_f32 v{Px+7}, v{Sx+14}, v{Sx+15}")
        pos = dict(mf); ex = {}
        for p, t in extra: ex.setdefault(p, []).append(t)
        for i, s in enumerate(seq):
            for t in ex.get(i, []): a(t)
            if i in pos: a(pos[i])
            a(s)
    mp = (2, 9, 16)
    a(".p2align 6")
    a.label("k2_loop")
    for u in range(2):
        Kc, Kn = Kb[u], Kb[1-u]
        Vc, Vn = Vb[u], Vb[1-u]
        o = 2048*(u+1)
        mf = [(mp[0], f"{MFMA} {vr(S[1],16)}, {vr(Kc,4)}, {vr(Q[1],4)}, {vr(NM[1],16)}"),
              (mp[1], f"{MFMA} {vr(O[1],16)}, {vr(Vn,4)}, {vr(P[1],4)}, {vr(O[1],16)}"),
              (mp[2], f"{MFMA} {vr(O[1],16)}, {vr(Vn+4,4)}, {vr(P[1]+4,4)}, {vr(O[1],16)}")]
        ex = [(0, f"ds_read_b128 {vr(Kn,4)}, v{vaddr} offset:{o}"),
              (mp[2]+2, "s_mov_b64 exec, s[40:41]"),
              (mp[2]+2, f"ds_read_b128 {vr(Vn,4)}, v{vaddr} offset:{o+1024}"),
              (mp[2]+2, f"ds_read_b128 {vr(Vn+4,4)}, v{vaddr} offset:{o+1280}"),
              (mp[2]+2, "s_mov_b64 exec, -1")]
        phase(S[0], P[0], mf, ex)
        mf = [(mp[0], f"{MFMA} {vr(S[0],16)}, {vr(Kn,4)}, {vr(Q[0],4)}, {vr(NM[0],16)}"),
              (mp[1], f"{MFMA} {vr(O[0],16)}, {vr(Vc,4)}, {vr(P[0],4)}, {vr(O[0],16)}"),
              (mp[2], f"{MFMA} {vr(O[0],16)}, {vr(Vc+4,4)}, {vr(P[0]+4,4)}, {vr(O[0],16)}")]
        ex = [(mp[0], "s_waitcnt lgkmcnt(2)")]
        if u == 1: ex.append((20, f"v_add_u32 v{vaddr}, 4096, v{vaddr}"))
        phase(S[1], P[1], mf, ex)
    a("s_sub_u32 s42, s42, 1", "s_cbranch_scc0 k2_loop")
    a("s_cmp_lg_u32 s43, 0", "s_cbranch_scc1 k2_loop_done")
    a("s_mov_b32 s43, 1", "s_mov_b32 s42, 28")
    a("s_cmp_lg_u32 s44, 0", "s_cbranch_scc1 k2_loop")
    a("s_barrier")
    a("s_branch k2_loop")
    a.label("k2_loop_done")
    a(f"{MFMA} {vr(O[1],16)}, {vr(Vb[1],4)}, {vr(P[1],4)}, {vr(O[1],16)}", f"{MFMA} {vr(O[1],16)}, {vr(Vb[1]+4,4)}, {vr(P[1]+4,4)}, {vr(O[1],16)}")
    a("s_waitcnt lgkmcnt(0)")
    a("s_nop 11")
    a("s_cmp_lg_u32 s44, 0", "s_cbranch_scc1 k2_store")
    a(f"v_add_f32 v{vt}, v{O[0]+8}, v{O[1]+8}")
    for q in range(2):
        for i in range(8): a(f"v_add_f32 v{vt}, abs(v{O[q]+i}), v{vt}")
    a(f"s_mov_b32 s47, {f32(2.0**110)}")
    a(f"v_cmp_ngt_f32 vcc, s47, v{vt}")
    a("s_nop 1")
    a("s_cmp_eq_u64 vcc, 0", "s_cbranch_scc1 k2_store")
    a("s_mov_b32 s44, 1", "s_mov_b32 s45, 31", "s_mov_b32 s46, 0")
    a("s_branch k2_pass")
    a.label("k2_store")
    for q in range(2):
        a(f"v_rcp_f32 v{vt+q}, v{O[q]+8}")
    a("s_nop 0")
    for q in range(2):
        for i in range(8): a(f"v_mul_f32 v{O[q]+i}, v{O[q]+i}, v{vt+q}")
        for i in range(4): a(f"v_cvt_pk_bf16_f32 v{P[q]+i}, v{O[q]+2*i}, v{O[q]+2*i+1}")
        a(f"buffer_store_dwordx4 {vr(P[q],4)}, v3, s[12:15], s{35+q} offen")
    a("s_endpgm")
    nv_att = v.n
    a.label("k2_gemm")
    v = RA(4)
    vt = v(); vt2 = v(); vred = v()
    acc = v(64, 4); fr = v(64, 4); z = v(4)
    a("s_sub_u32 s3, s3, 4")
    a("s_lshl_b32 s33, s3, 10", "s_add_u32 s34, s32, s33", f"s_add_u32 s34, s34, {WS_K}", f"s_add_u32 s35, s34, {WS_V-WS_K-1024}")
    a("s_lshl_b32 s36, s3, 11")
    def kv_rounds(n, tag):
        a(f"s_mov_b32 s37, {n-1}")
        a.label(tag)
        a("s_mov_b32 m0, s36", "s_add_u32 s36, s36, 8192")
        a("buffer_load_dwordx4 v3, s[12:15], s34 offen lds", "buffer_load_dwordx4 v3, s[12:15], s35 offen offset:1024 lds")
        a("s_add_u32 s34, s34, 4096", "s_add_u32 s35, s35, 4096")
        a("s_sub_u32 s37, s37, 1", f"s_cbranch_scc0 {tag}")
    R1 = 8
    kv_rounds(R1, "k2_kv1")
    for i in range(4): a(f"v_mov_b32 v{z+i}, 0")
    a(f"v_lshlrev_b32 v{vt}, 4, v0", f"v_add_u32 v{vt}, {RED - 4096}, v{vt}")
    for i in range(5): a(f"ds_write_b128 v{vt}, {vr(z,4)} offset:{4096*i}")
    a(f"s_waitcnt vmcnt({2*(R1-2)})", "s_waitcnt lgkmcnt(0)", "s_barrier")
    kv_rounds(16 - R1, "k2_kv2")
    a("s_and_b32 s38, s2, 7", "s_lshl_b32 s38, s38, 2", "s_lshr_b32 s39, s2, 3", "s_and_b32 s39, s39, 3", "s_add_u32 s38, s38, s39")
    a(f"s_mul_i32 s39, s3, {28*1024}")
    a(f"s_mul_i32 s40, s38, {2*112*1024}", "s_add_u32 s40, s40, s39", f"s_add_u32 s40, s40, {WS_H}", f"s_add_u32 s41, s40, {112*1024}")
    a(f"s_mul_i32 s42, s31, {2*144*1024}", "s_add_u32 s42, s42, s39", f"s_add_u32 s42, s42, {WS_WT + 32*1024}", f"s_add_u32 s43, s42, {144*1024}")
    def loads(u):
        return [f"buffer_load_dwordx4 {vr(fr+16*u+4*j,4)}, v3, s[12:15], s{40+j} offen offset:{u*1024}" for j in range(4)]
    for u in range(4):
        for l in loads(u): a(l)
    for j in range(4): a(f"s_add_u32 s{40+j}, s{40+j}, 4096")
    for i in range(64): a(f"v_mov_b32 v{acc+i}, 0")
    a("s_waitcnt vmcnt(16)", "s_barrier")
    a("s_mov_b32 s37, 6")
    a.label("k2_gloop")
    for u in range(4):
        a("s_waitcnt vmcnt(12)")
        f = fr + 16*u
        for t in range(2):
            for b in range(2):
                d = acc + 16*(2*t+b)
                a(f"{MFMA} {vr(d,16)}, {vr(f+4*t,4)}, {vr(f+8+4*b,4)}, {vr(d,16)}")
        for l in loads(u): a(l)
    for j in range(4): a(f"s_add_u32 s{40+j}, s{40+j}, 4096")
    a("s_sub_u32 s37, s37, 1", "s_cbranch_scc0 k2_gloop")
    a(f"v_and_b32 v{vt}, 31, v2", f"v_lshrrev_b32 v{vt2}, 5, v2", f"v_mul_u32_u24 v{vt2}, {4*RS}, v{vt2}", f"v_lshl_add_u32 v{vred}, v{vt}, 2, v{vt2}")
    a(f"v_add_u32 v{vred}, {RED}, v{vred}")
    a("s_nop 4")
    for t in range(2):
        for b in range(2):
            d = acc + 16*(2*t+b)
            for r in range(16):
                a(f"ds_add_f32 v{vred}, v{d+r} offset:{(32*t + 8*(r>>2) + (r&3))*RS + 128*b}")
    a(f"v_mov_b32 v{vt}, {CNT}", f"v_mov_b32 v{vt2}, 1")
    a("s_waitcnt lgkmcnt(0)")
    a("s_mov_b64 exec, 1")
    a(f"ds_add_rtn_u32 v{vt2}, v{vt}, v{vt2}")
    a("s_waitcnt lgkmcnt(0)")
    a(f"v_readfirstlane_b32 s37, v{vt2}")
    a("s_mov_b64 exec, -1")
    a("s_cmp_lg_u32 s37, 3", "s_cbranch_scc1 k2_end")
    a("s_waitcnt vmcnt(0)")
    a(f"v_lshrrev_b32 v{vt}, 3, v2", f"v_mul_u32_u24 v{vt}, {RS}, v{vt}", f"v_and_b32 v{vt2}, 7, v2", f"v_lshl_add_u32 v{vt}, v{vt2}, 5, v{vt}")
    a(f"v_add_u32 v{vt}, {RED}, v{vt}")
    a("s_lshl_b32 s40, s2, 14", f"s_add_u32 s40, s40, {WS_P}")
    for p in range(4):
        for tq in range(4):
            a(f"ds_read_b128 {vr(acc+16*p+4*tq,4)}, v{vt} offset:{(8*tq + 32*(p>>1))*RS + (p&1)*16}")
        if p == 2: a("s_waitcnt lgkmcnt(4)")
    for p in range(4):
        a(f"s_waitcnt lgkmcnt({min(12-4*p, 4) if p < 3 else 0})")
        for tq in range(4):
            a(f"buffer_store_dwordx4 {vr(acc+16*p+4*tq,4)}, v3, s[12:15], s40 offen offset:{tq*1024}")
        a("s_add_u32 s40, s40, 4096")
    a.label("k2_end")
    a("s_endpgm")
    nv = max(nv_att, v.n)
    return a.text(), descriptor(name, nv), f"; @launch kernel={name} grid=(256,1,1) block=(512,1,1) lds={RED + 20480}"

from gen_k1 import gen_k1

HEADER = """; Generated by gen/gen.py (hand-written generator).  Three launches:
"""
def build(which=(1, 2, 3)):
    ks = {1: gen_k1, 2: gen_k2, 3: gen_k3}
    parts = {i: ks[i]() for i in (1, 2, 3)}
    for i, p in parts.items():
        errs = check_hazards(p[0])
        for e in errs: print(f"HAZARD k{i}:", e, file=sys.stderr)
    s = HEADER + "\n".join(parts[i][2] for i in which) + "\n"
    s += '.amdgcn_target "amdgcn-amd-amdhsa--gfx950"\n.text\n'
    for i in which: s += parts[i][0]
    for i in which: s += parts[i][1]
    return s

if __name__ == "__main__":
    out = sys.argv[1] if len(sys.argv) > 1 else f"cdna_kernels/{NAME}.s"
    which = tuple(int(c) for c in sys.argv[2]) if len(sys.argv) > 2 else (1, 2, 3)
    open(out, "w").write(build(which))
    print("wrote", out)
```
